```python
import torch

def _softmax(x, axis=-1):
    return torch.softmax(x, dim=axis)
def _gelu(x):
    return torch.nn.functional.gelu(x, approximate="tanh")
def _silu(x):
    return torch.nn.functional.silu(x)
def _sigmoid(x):
    return torch.sigmoid(x)
def _layernorm(x, axis=-1, eps=1e-5):
    m = x.mean(dim=axis, keepdim=True)
    v = x.var(dim=axis, keepdim=True, unbiased=False)
    return (x - m) / torch.sqrt(v + eps)
def _scatter_add(tgt, idx, src, axis=0):
    return tgt.clone().index_add_(axis, idx, src)
def _segment_sum(src, seg, n):
    out = torch.zeros((n,) + src.shape[1:], dtype=src.dtype)
    return out.index_add_(0, seg, src)
def _pad(x, pw):
    flat = tuple(v for pair in reversed(pw) for v in pair)
    return torch.nn.functional.pad(x, flat)

kernel_name = 'sequential_preLN__mha_block_cached__geglu_ffn__decode'

def setup_inputs():

    _w = (lambda a: (lambda t: t.to(torch.bfloat16) if t.is_floating_point() else t)(torch.as_tensor(a)))
    def _A_setup():
        B, Sq, D = 2, 1, 512
        H, Sk, Dh = 32, 8192, 128
        return {
            "x": _w((lambda *s: torch.randn(*s, dtype=torch.bfloat16) * 0.05)(B, Sq, D)),
            "k_cache": _w((lambda *s: torch.randn(*s, dtype=torch.bfloat16) * 3.2)(B, H, Sk, Dh)),
            "v_cache": _w((lambda *s: torch.randn(*s, dtype=torch.bfloat16) * 0.4)(B, H, Sk, Dh)),
            "wq": _w((lambda *s: torch.randn(*s, dtype=torch.bfloat16) * 3.2)(D, H * Dh) * (D ** -0.5)),
            "wo": _w((lambda *s: torch.randn(*s, dtype=torch.bfloat16) * 0.4)(H * Dh, D) * ((H * Dh) ** -0.5)),
        }
    _A_in = _A_setup()

    def _B_setup():
        B, S, D, F = 2, 1, 512, 1376
        return {
            "x": _w((lambda *s: torch.randn(*s, dtype=torch.bfloat16) * 0.05)(B, S, D)),
            "w_gate": _w((lambda *s: torch.randn(*s, dtype=torch.bfloat16) * 0.05)(D, F)),
            "w_up": _w((lambda *s: torch.randn(*s, dtype=torch.bfloat16) * 0.05)(D, F)),
            "w_down": _w((lambda *s: torch.randn(*s, dtype=torch.bfloat16) * 0.05)(F, D)),
        }
    _B_in = _B_setup()

    return {
        "A_x": _A_in["x"],
        "A_k_cache": _A_in["k_cache"],
        "A_v_cache": _A_in["v_cache"],
        "A_wq": _A_in["wq"],
        "A_wo": _A_in["wo"],
        "B_x": _B_in["x"],
        "B_w_gate": _B_in["w_gate"],
        "B_w_up": _B_in["w_up"],
        "B_w_down": _B_in["w_down"],
    }

def reference(A_x, A_k_cache, A_v_cache, A_wq, A_wo, B_x, B_w_gate, B_w_up, B_w_down):
    def _A_ref(x, k_cache, v_cache, wq, wo):
        B, Sq, D = x.shape
        H, Dh = 32, 128
        q = (lambda x, *d: x.permute(*d))((x @ wq).reshape(B, Sq, H, Dh), 0, 2, 1, 3)
        scores = torch.einsum("bhqd,bhkd->bhqk", q, k_cache) * (Dh ** -0.5)
        p = _softmax(scores, axis=-1)
        o = torch.einsum("bhqk,bhkd->bhqd", p, v_cache)
        return (lambda x, *d: x.permute(*d))(o, 0, 2, 1, 3).reshape(B, Sq, H * Dh) @ wo

    def _B_ref(x, w_gate, w_up, w_down):
        return (_gelu(x @ w_gate) * (x @ w_up)) @ w_down

    x = A_x
    h = x + _A_ref(_layernorm(x, axis=-1), A_k_cache, A_v_cache, A_wq, A_wo)
    h2 = h + _B_ref(_layernorm(h, axis=-1), B_w_gate, B_w_up, B_w_down)
    return h2
```

```python
import re

def regs_of(tok):
    tok = tok.strip()
    tok = re.sub(r'^-', '', tok)
    m = re.match(r'^abs\((.*)\)$', tok)
    if m: tok = m.group(1)
    m = re.match(r'^\|(.*)\|$', tok)
    if m: tok = m.group(1)
    if tok == 'vcc': return {('s', 106), ('s', 107)}
    if tok == 'vcc_lo': return {('s', 106)}
    if tok == 'vcc_hi': return {('s', 107)}
    if tok == 'exec': return {('s', 126), ('s', 127)}
    if tok == 'm0': return {('s', 124)}
    m = re.match(r'^([vsa])(\d+)$', tok)
    if m: return {(m.group(1), int(m.group(2)))}
    m = re.match(r'^([vsa])\[(\d+):(\d+)\]$', tok)
    if m: return {(m.group(1), i) for i in range(int(m.group(2)), int(m.group(3)) + 1)}
    return set()

TRANS = ('v_exp_f32', 'v_log_f32', 'v_rcp_f32', 'v_rsq_f32', 'v_sqrt_f32', 'v_sin_f32', 'v_cos_f32')

class Ins:
    def __init__(self, text):
        self.text = text
        t = text.split(';')[0].strip()
        parts = t.split(None, 1)
        self.op = parts[0]
        rest = parts[1] if len(parts) > 1 else ''
        ops, depth, cur = [], 0, ''
        for ch in rest:
            if ch in '[(': depth += 1
            if ch in '])': depth -= 1
            if ch == ',' and depth == 0:
                ops.append(cur.strip()); cur = ''
            else:
                cur += ch
        if cur.strip(): ops.append(cur.strip())
        mods = ''
        if ops:
            sp = ops[-1].split(None, 1)
            ops[-1] = sp[0]
            mods = sp[1] if len(sp) > 1 else ''
        self.ops = ops
        self.mods = mods
        op = self.op
        self.is_mfma = op.startswith('v_mfma')
        self.is_valu = op.startswith('v_') and not self.is_mfma
        self.is_dot = op.startswith('v_dot')
        self.is_dpp = '_dpp' in op
        self.is_trans = any(op.startswith(x) for x in TRANS)
        self.is_vmem = op.startswith('buffer_') or op.startswith('global_')
        self.is_ds = op.startswith('ds_')
        self.is_salu = op.startswith('s_')
        self.is_perml = op.startswith('v_permlane')
        self.is_rdlane = op.startswith('v_readlane') or op.startswith('v_readfirstlane')
        self.states = 1
        if op == 's_nop': self.states = int(ops[0], 0) + 1
        R = [regs_of(o) for o in ops]
        self.wr, self.rd = set(), set()
        self.srcc = set(); self.srcab = set(); self.dpp_src = set(); self.store_data = set()
        allr = set().union(*R) if R else set()
        if self.is_mfma:
            self.wr = R[0]; self.srcab = R[1] | R[2]; self.srcc = R[3]; self.rd = self.srcab | self.srcc
        elif self.is_valu:
            if self.is_perml:
                self.wr = R[0] | R[1]; self.rd = R[0] | R[1]
            elif op.startswith('v_cmp'):
                self.wr = R[0]; self.rd = set().union(*R[1:])
            elif '_co_' in op:
                self.wr = R[0] | R[1]; self.rd = set().union(*R[2:])
            else:
                self.wr = R[0]; self.rd = set().union(*R[1:]) if len(R) > 1 else set()
                if op.startswith('v_fmac') or op.startswith('v_dot2c') or self.is_dpp or op.startswith('v_writelane'):
                    self.rd = self.rd | R[0]
                if self.is_dpp: self.dpp_src = R[1]
                if self.is_dot:
                    self.srcc = R[3] if len(R) > 3 else R[0]
                    self.srcab = R[1] | R[2]
        elif self.is_vmem:
            is_lds = ' lds' in (' ' + mods)
            if 'store' in op or 'atomic' in op or is_lds:
                self.rd = allr
                if 'store' in op and ('x4' in op or 'x3' in op):
                    self.store_data = R[0] if op.startswith('buffer_') else R[1]
                if is_lds: self.rd = self.rd | {('s', 124)}
                self.is_ldsdma = is_lds
            else:
                self.wr = R[0]; self.rd = set().union(*R[1:])
        elif self.is_ds:
            if 'read' in op or 'permute' in op or 'swizzle' in op:
                self.wr = R[0]; self.rd = set().union(*R[1:])
            else:
                self.rd = allr
        elif self.is_salu:
            if op.startswith('s_cmp') or op.startswith('s_cbranch') or op in ('s_waitcnt', 's_nop', 's_barrier', 's_branch', 's_sleep', 's_setprio', 's_endpgm'):
                self.rd = allr
            else:
                self.wr = R[0] if R else set(); self.rd = set().union(*R[1:]) if len(R) > 1 else set()
                if 'saveexec' in op: self.wr = self.wr | {('s', 126), ('s', 127)}

def need(p, c):
    n = 0
    vw = {r for r in p.wr if r[0] in 'va'}
    sw = {r for r in p.wr if r[0] == 's'}
    if p.is_valu:
        if c.is_valu and c.is_dpp and (vw & c.dpp_src): n = max(n, 2)
        if c.is_rdlane and (vw & c.rd): n = max(n, 1)
        if c.is_perml and (vw & c.rd): n = max(n, 2)
        if c.is_mfma and (vw & c.rd): n = max(n, 2)
        if p.is_trans and c.is_valu and not c.is_trans and (vw & c.rd): n = max(n, 1)
        if p.is_trans and (c.is_vmem or c.is_ds) and (vw & c.rd): n = max(n, 1)
        if sw:
            if (c.is_valu or c.is_mfma) and (sw & c.rd): n = max(n, 4 if (c.is_rdlane or c.op.startswith('v_writelane')) else 2)
            if c.is_vmem and (sw & c.rd): n = max(n, 5)
            if c.is_salu and (sw & c.rd): n = max(n, 1)
        if p.is_dot:
            if c.op == p.op:
                if vw & c.srcab: n = max(n, 3)
            elif vw & (c.rd | c.wr): n = max(n, 3)
    if p.is_mfma:
        passes = 8 if '32x32' in p.op else 4
        big = {4: 8, 8: 12}[passes]
        if c.is_mfma:
            if p.wr & c.srcab: n = max(n, big)
            if p.wr & c.srcc and p.wr != c.srcc: n = max(n, {4: 6, 8: 10}[passes])
            if p.wr & c.wr and p.wr != c.srcc: n = max(n, big)
        elif p.wr & (c.rd | c.wr): n = max(n, big)
        if c.is_valu and (p.srcc & c.wr): n = max(n, {4: 3, 8: 7}[passes])
    if p.is_vmem and p.store_data and (p.store_data & c.wr): n = max(n, 2)
    if p.is_salu and ('s', 124) in p.wr and c.is_vmem and ('s', 124) in c.rd: n = max(n, 1)
    return n

class Asm:
    def __init__(self):
        self.lines = []
        self.hist = []
        self.vmq = []
        self.nid = 0
        self.nnops = 0
    def raw(self, s):
        self.lines.append(s)
    def label(self, name):
        self.lines.append(name + ':')
    def clear_hist(self):
        self.hist = []
    def __call__(self, text):
        ins = Ins(text)
        dist = 0
        req = 0
        for p in reversed(self.hist):
            n = need(p, ins)
            if n > dist: req = max(req, n - dist)
            dist += p.states
            if dist >= 20: break
        while req > 0:
            k = min(req, 16)
            nop = Ins(f's_nop {k-1}')
            self.lines.append(f'  s_nop {k-1}')
            self.hist.append(nop); self.nnops += 1
            req -= k
        self.lines.append('  ' + text)
        self.hist.append(ins)
        if len(self.hist) > 40: self.hist = self.hist[-30:]
        if ins.op in ('s_branch', 's_endpgm'): self.hist = []
        if ins.is_vmem:
            self.nid += 1
            self.vmq.append(self.nid)
            return self.nid
        return None
    def vm_wait(self, id_):
        if id_ not in self.vmq: return
        idx = self.vmq.index(id_)
        n = len(self.vmq) - 1 - idx
        assert n <= 63
        self(f's_waitcnt vmcnt({n})')
        self.vmq = self.vmq[idx + 1:]
    def vm_wait_all(self):
        self('s_waitcnt vmcnt(0)')
        self.vmq = []
    def vm_reset(self):
        self.vmq = []
    def text(self):
        return '\n'.join(self.lines) + '\n'
```

```python
import sys, struct
from asmlib import Asm

NAME = "sequential_preLN__mha_block_cached__geglu_ffn__decode"

def f32(x):
    return "0x%08x" % struct.unpack("<I", struct.pack("<f", x))[0]

QP = 0x000000
ML = 0x040000
MK = 0x042000
OP = 0x050000
YP = 0x070000
ZP = 0x080000
ST = 0x100000
WS_REC = 0x200000
L_Q = 0x0000
L_ML = 0x0100
L_SF = 0x0120
L_ZERO = 0x0130
L_O = 0x0200
L_YS = 0x0A00
L_XN = 0x1200
XN_STRIDE = 1088
L_ACT = 0x1B00
L_STG = 0x2000
LDS_BYTES = L_STG + 65536

NFFN = 43
POLL_LIMIT = 40000
LOG2E = 1.4426950408889634

DEFAULTS = dict(ring=48, dist=16, dist_kv=16, stamps=False, marker_at=116, wflags="nt", sleep_gate=8)

def lane_of_load(i):
    return ((i & 1) << 3) | (((i >> 1) & 1) << 2) | ((i >> 2) & 1) | (((i >> 3) & 1) << 1)

def gen(**kw):
    o = dict(DEFAULTS); o.update(kw)
    A = Asm()
    lab = [0]
    def newlabel(p):
        lab[0] += 1
        return f"L_{p}_{lab[0]}"
    nst = {}
    def stamp(role, k):
        if not o['stamps']: return
        A(f"s_memrealtime s[{72+2*k}:{73+2*k}]")
        A("s_waitcnt lgkmcnt(0)")
    def flush_stamps(n):
        if not o['stamps']: return
        A("s_mov_b64 exec, 1")
        A("s_lshl_b32 s70, s2, 3")
        A("s_add_u32 s70, s70, s3")
        A("s_lshl_b32 s70, s70, 6")
        A(f"s_add_u32 s70, s70, {ST}")
        A("v_mov_b32 v1, s70")
        for k in range(n):
            A(f"v_mov_b32 v2, s{72+2*k}")
            A(f"buffer_store_dword v2, v1, s[48:51], 0 offen offset:{4*k}")
            A("s_nop 1")
        A("s_waitcnt vmcnt(0)")

    def allreduce(op, regs, tmps):
        for k in (8, 4, 2, 1):
            for r in regs:
                A(f"{op}_dpp v{r}, v{r}, v{r} row_ror:{k} row_mask:0xf bank_mask:0xf")
        crossrows(op, regs, tmps)
    def crossrows(op, regs, tmps):
        for sw in ("v_permlane16_swap_b32", "v_permlane32_swap_b32"):
            for r, t in zip(regs, tmps): A(f"v_mov_b32 v{t}, v{r}")
            for r, t in zip(regs, tmps): A(f"{sw} v{r}, v{t}")
            for r, t in zip(regs, tmps): A(f"{op} v{r}, v{r}, v{t}")
    def rbf(d, s):
        A(f"v_cvt_pk_bf16_f32 v{d}, v{s}, v{s}")
        A(f"v_and_b32 v{d}, 0xffff0000, v{d}")
    def srd(d, lo, nrec):
        A(f"s_mov_b32 s{d}, s{lo}")
        A(f"s_mov_b32 s{d+1}, s{lo+1}")
        A(f"s_mov_b32 s{d+2}, {nrec:#x}")
        A(f"s_mov_b32 s{d+3}, 0x20000")
    def maxtree(dst, regs):
        regs = list(regs)
        if len(regs) == 1:
            A(f"v_mov_b32 v{dst}, v{regs[0]}"); return
        if len(regs) == 2:
            A(f"v_max_u32 v{dst}, v{regs[0]}, v{regs[1]}"); return
        A(f"v_max3_u32 v{dst}, v{regs[0]}, v{regs[1]}, v{regs[2]}")
        rest = regs[3:]
        while len(rest) >= 2:
            A(f"v_max3_u32 v{dst}, v{dst}, v{rest[0]}, v{rest[1]}"); rest = rest[2:]
        if rest: A(f"v_max_u32 v{dst}, v{dst}, v{rest[0]}")
    def poll(loads, regs, tmp, sleep=0, masked=True, exec_restore="-1"):
        L = newlabel("poll"); D = newlabel("polld")
        A("s_mov_b32 s70, 0")
        A.label(L)
        for l in loads: A(l)
        A("s_waitcnt vmcnt(0)"); A.vm_reset()
        maxtree(tmp, regs)
        A(f"v_cmp_eq_u32 vcc, -1, v{tmp}")
        A(f"s_cbranch_vccz {D}")
        if masked: A("s_mov_b64 exec, vcc")
        A("s_add_u32 s70, s70, 1")
        if sleep: A(f"s_sleep {sleep}")
        A(f"s_cmp_lt_u32 s70, {POLL_LIMIT}")
        A(f"s_cbranch_scc1 {L}")
        A.label(D)
        if masked: A(f"s_mov_b64 exec, {exec_restore}")

    H = open("cdna_kernels/" + NAME + ".s.ref").read().split("\n")
    hdr = [l for l in H if l.startswith(";") and "@launch" not in l]
    for l in hdr: A.raw(l)
    A.raw(f"; @launch grid=(256,1,1) block=(512,1,1) lds={LDS_BYTES}")
    A.raw('.amdgcn_target "amdgcn-amd-amdhsa--gfx950"')
    A.raw(".text")
    A.raw(f".globl {NAME}_kernel")
    A.raw(".p2align 8")
    A.raw(f".type {NAME}_kernel,@function")
    A.label(f"{NAME}_kernel")
    A("s_load_dwordx16 s[16:31], s[0:1], 0")
    A("s_load_dwordx8 s[32:39], s[0:1], 64")
    if o['stamps']: A("s_memrealtime s[72:73]")
    A("s_cmp_ge_u32 s2, 256")
    A("s_cbranch_scc1 L_exit")
    A("v_lshrrev_b32 v1, 6, v0")
    A("v_and_b32 v0, 63, v0")
    A("v_readfirstlane_b32 s3, v1")
    A("s_and_b32 s4, s2, 7")
    A("s_lshr_b32 s10, s2, 3")
    A("s_and_b32 s5, s10, 3")
    A("s_lshr_b32 s10, s10, 2")
    A("s_lshl_b32 s8, s10, 3")
    A("s_add_u32 s8, s8, s4")
    A("s_cmp_lt_u32 s3, 4")
    A("s_cbranch_scc1 L_helper")

    RING = o['ring']; RB = 256 - 4 * RING
    assert RB >= 48
    A("s_lshl_b32 s11, s8, 2")
    A("s_add_u32 s11, s11, s5")
    A("s_lshl_b32 s11, s11, 19")
    A("s_sub_u32 s12, s3, 4")
    A("s_lshl_b32 s13, s12, 12")
    A("s_add_u32 s11, s11, s13")
    A("v_lshl_add_u32 v1, v0, 4, s11")
    A("s_mov_b32 s42, 0x8000000")
    A("s_mov_b32 s43, 0x20000")
    A("s_mov_b32 s46, 0x8000000")
    A("s_mov_b32 s47, 0x20000")
    A("s_mov_b32 s14, 0")
    A("s_waitcnt lgkmcnt(0)")
    A("s_mov_b32 s40, s18")
    A("s_mov_b32 s41, s19")
    NL = 128
    ids = {}
    state = dict(nxt=0, soff=0)
    def issue(i):
        isv = i >= NL
        j = i % NL
        so = (j >> 2) * 16384
        if so != state['soff']:
            if so < 65536 and so > 0 and so <= 32767: A(f"s_movk_i32 s14, {so}")
            else: A(f"s_mov_b32 s14, {so:#x}")
            state['soff'] = so
        r = RB + 4 * (i % RING)
        off = (j & 3) * 1024
        ids[i] = A(f"buffer_load_dwordx4 v[{r}:{r+3}], v1, {'s[44:47]' if isv else 's[40:43]'}, s14 offen" + (f" offset:{off}" if off else "") + " nt")
    def issue_upto(n):
        while state['nxt'] < min(n, 2 * NL):
            issue(state['nxt']); state['nxt'] += 1
    issue_upto(8)
    A("s_mov_b32 s44, s20")
    A("s_mov_b32 s45, s21")
    issue_upto(RING)
    srd(48, 38, WS_REC)
    A("v_and_b32 v30, 7, v0")
    A("v_lshrrev_b32 v31, 1, v30")
    A("v_and_b32 v32, 1, v30")
    A("v_lshlrev_b32 v32, 4, v32")
    A("v_mov_b32 v33, 0xffff")
    A("v_lshlrev_b32 v33, v32, v33")
    for r in range(4):
        A(f"v_cmp_eq_u32 vcc, {r}, v31")
        A(f"v_cndmask_b32 v{6+r}, 0, v33, vcc")
    A("s_mov_b32 s64, 0xaaaaaaaa"); A("s_mov_b32 s65, 0xaaaaaaaa")
    A("s_mov_b32 s66, 0xcccccccc"); A("s_mov_b32 s67, 0xcccccccc")
    A(f"s_mov_b32 s68, {f32(128 ** -0.5)}")
    A(f"s_mov_b32 s69, {f32(LOG2E)}")
    A("v_and_b32 v34, 15, v0")
    A("v_lshlrev_b32 v34, 4, v34")
    A("s_and_b32 s7, s8, 31")
    A("s_lshr_b32 s6, s8, 5")
    A("s_lshl_b32 s9, s6, 2")
    A("s_add_u32 s9, s9, s5")
    A("s_lshl_b32 s10, s7, 3")
    A("s_add_u32 s10, s10, s9")
    A("s_lshl_b32 s10, s10, 2")
    A(f"s_add_u32 s10, s10, {MK:#x}")
    A("v_mov_b32 v46, s10")
    A("v_mov_b32 v47, 1")
    stamp('s', 1)
    A("s_barrier")
    A(f"ds_read_b128 v[2:5], v34 offset:{L_Q}")
    A("s_waitcnt lgkmcnt(0)")
    stamp('s', 2)
    T = (30, 31); U = (32, 33); V = (34, 35); R = (36, 37); X, Y = 38, 39
    for i in range(NL):
        blk, ii = i >> 4, i & 15
        A.vm_wait(ids[i])
        r = RB + 4 * (i % RING)
        t = T[ii & 1]
        A(f"v_dot2_f32_bf16 v{t}, v{r}, v2, 0")
        for k in range(1, 4):
            A(f"v_dot2_f32_bf16 v{t}, v{r+k}, v{2+k}, v{t}")
        d = o['dist'] if i < NL - RING else o['dist_kv']
        issue_upto(min(i + 1 + d, i + 1 + RING) if True else 0)
        if ii & 1:
            u = U[(ii >> 1) & 1]
            A(f"v_add_f32_dpp v{u}, v{T[0]}, v{T[0]} row_ror:8 row_mask:0xf bank_mask:0x3")
            A(f"v_add_f32_dpp v{u}, v{T[1]}, v{T[1]} row_ror:8 row_mask:0xf bank_mask:0xc")
        if (ii & 3) == 3:
            v = V[(ii >> 2) & 1]
            A(f"v_add_f32_dpp v{v}, v{U[0]}, v{U[0]} row_shl:4 row_mask:0xf bank_mask:0x5")
            A(f"v_add_f32_dpp v{v}, v{U[1]}, v{U[1]} row_shr:4 row_mask:0xf bank_mask:0xa")
        if (ii & 7) == 7:
            rr = R[(ii >> 3) & 1]
            A(f"v_cndmask_b32 v{X}, v{V[0]}, v{V[1]}, s[64:65]")
            A(f"v_cndmask_b32 v{Y}, v{V[1]}, v{V[0]}, s[64:65]")
            A(f"v_add_f32_dpp v{rr}, v{Y}, v{X} quad_perm:[1,0,3,2] row_mask:0xf bank_mask:0xf")
        if ii == 15:
            s = 10 + blk
            A(f"v_cndmask_b32 v{X}, v{R[0]}, v{R[1]}, s[66:67]")
            A(f"v_cndmask_b32 v{Y}, v{R[1]}, v{R[0]}, s[66:67]")
            A(f"v_add_f32_dpp v{s}, v{Y}, v{X} quad_perm:[2,3,0,1] row_mask:0xf bank_mask:0xf")
            rbf(s, s)
            A(f"v_mul_f32 v{s}, s68, v{s}")
            rbf(s, s)
    stamp('s', 3)
    A("v_max3_f32 v30, v10, v11, v12")
    A("v_max3_f32 v31, v13, v14, v15")
    A("v_max3_f32 v30, v30, v16, v17")
    A("v_max_f32 v30, v30, v31")
    allreduce("v_max_f32", [30], [32])
    for k in range(8): A(f"v_sub_f32 v{10+k}, v{10+k}, v30")
    for k in range(8): A(f"v_mul_f32 v{10+k}, s69, v{10+k}")
    for k in range(8): A(f"v_exp_f32 v{10+k}, v{10+k}")
    A("v_add_f32 v31, v10, v11"); A("v_add_f32 v32, v12, v13"); A("v_add_f32 v33, v14, v15"); A("v_add_f32 v34, v16, v17")
    A("v_add_f32 v31, v31, v32"); A("v_add_f32 v33, v33, v34"); A("v_add_f32 v31, v31, v33")
    for k in range(8): A(f"v_cvt_pk_bf16_f32 v{10+k}, v{10+k}, v{10+k}")
    allreduce("v_add_f32", [31], [32])
    A("v_min_u32 v30, -2, v30")
    A("v_min_u32 v31, -2, v31")
    A("s_lshl_b32 s13, s12, 3")
    A("v_mov_b32 v32, s13")
    A(f"ds_write_b64 v32, v[30:31] offset:{L_ML}")
    def mk_a(i):
        blk, ii = i >> 4, i & 15
        a = 22 + 4 * (i & 1)
        for k in range(4):
            A(f"v_and_b32_dpp v{a+k}, v{10+blk}, v{6+k} row_newbcast:{lane_of_load(ii)} row_mask:0xf bank_mask:0xf")
    mk_a(0)
    for i in range(NL):
        gi = NL + i
        if i + 1 < NL: mk_a(i + 1)
        A.vm_wait(ids[gi])
        r = RB + 4 * (gi % RING)
        a = 22 + 4 * (i & 1)
        A(f"v_mfma_f32_16x16x32_bf16 v[18:21], v[{a}:{a+3}], v[{r}:{r+3}], {'0' if i == 0 else 'v[18:21]'}")
        issue_upto(gi + 1 + o['dist'])
        if i == o['marker_at']:
            A("s_mov_b64 exec, 1")
            A("buffer_store_dword v47, v46, s[48:51], 0 offen sc1")
            A("s_mov_b64 exec, -1")
    A("v_and_b32 v30, 15, v0")
    A("v_lshlrev_b32 v30, 5, v30")
    A("v_bfe_u32 v31, v0, 4, 1")
    A("v_lshl_add_u32 v30, v31, 4, v30")
    A("s_lshl_b32 s13, s12, 9")
    A("v_add_u32 v30, s13, v30")
    A("s_mov_b32 exec_hi, 0")
    A(f"ds_write_b128 v30, v[18:21] offset:{L_O}")
    A("s_waitcnt lgkmcnt(0)")
    stamp('s', 4)
    A("s_barrier")
    flush_stamps(5)
    A.label("L_exit")
    A("s_endpgm")

    A.vm_reset()
    A.label("L_helper")
    A("s_and_b32 s7, s8, 31")
    A("s_lshr_b32 s6, s8, 5")
    A("s_lshl_b32 s9, s6, 2")
    A("s_add_u32 s9, s9, s5")
    A("v_and_b32 v1, 15, v0")
    A("v_lshrrev_b32 v2, 4, v0")
    A("v_mov_b32 v60, -1"); A("v_mov_b32 v61, -1"); A("v_mov_b32 v62, -1"); A("v_mov_b32 v63, -1")
    A("s_waitcnt lgkmcnt(0)")
    srd(48, 38, WS_REC)
    srd(52, 36, 256)
    srd(56, 16, 2048)
    A("s_cmp_eq_u32 s3, 0")
    A("s_cbranch_scc0 L_h123")
    A("s_setprio 3")
    srd(40, 22, 4 << 20)
    A("s_lshl_b32 s10, s7, 13")
    A("s_lshl_b32 s11, s9, 9")
    A("s_add_u32 s10, s10, s11")
    A("v_lshrrev_b32 v3, 1, v2")
    A("v_lshlrev_b32 v3, 12, v3")
    A("v_lshl_add_u32 v3, v1, 5, v3")
    A("v_and_b32 v4, 1, v2")
    A("v_lshl_add_u32 v3, v4, 4, v3")
    A("v_add_u32 v58, s10, v3")
    A("v_lshlrev_b32 v3, 4, v0")
    lx0 = A("buffer_load_dwordx4 v[4:7], v3, s[56:59], 0 offen")
    lx1 = A("buffer_load_dwordx4 v[8:11], v3, s[56:59], 0 offen offset:1024")
    A("v_lshrrev_b32 v3, 3, v1")
    A("v_lshlrev_b32 v3, 10, v3")
    A("v_lshl_add_u32 v3, v2, 5, v3")
    A("s_lshl_b32 s10, s9, 7")
    A("v_add_u32 v3, s10, v3")
    A("buffer_load_dwordx4 v[12:15], v3, s[56:59], 0 offen")
    lx2 = A("buffer_load_dwordx4 v[16:19], v3, s[56:59], 0 offen offset:16")
    A("s_lshl_b32 s10, s9, 19")
    A("s_lshl_b32 s11, s7, 8")
    A("s_add_u32 s10, s10, s11")
    A("v_lshlrev_b32 v3, 17, v2")
    A("v_lshl_add_u32 v3, v1, 4, v3")
    A("v_add_u32 v3, s10, v3")
    lw = []
    for t in range(16):
        A(f"s_mov_b32 s14, {t*8192}")
        lw.append(A(f"buffer_load_dwordx4 v[{64+4*t}:{67+4*t}], v3, s[40:43], s14 offen {o['wflags']}"))
    A("s_lshl_b32 s10, s7, 3")
    A("v_mov_b32 v56, s10")
    A("v_and_b32 v30, 7, v0")
    A("v_lshrrev_b32 v31, 1, v30")
    A("v_and_b32 v32, 1, v30")
    A("v_lshlrev_b32 v32, 4, v32")
    A("v_mov_b32 v33, 0xffff")
    A("v_lshlrev_b32 v33, v32, v33")
    for r in range(4):
        A(f"v_cmp_eq_u32 vcc, {r}, v31")
        A(f"v_cndmask_b32 v{52+r}, 0, v33, vcc")
    A.vm_wait(lx1)
    stamp('h', 1)
    for b in range(2):
        for k in range(4):
            A(f"v_lshlrev_b32 v{20+8*b+2*k}, 16, v{4+4*b+k}")
            A(f"v_and_b32 v{21+8*b+2*k}, 0xffff0000, v{4+4*b+k}")
    def sum8(d, base, tmp):
        A(f"v_add_f32 v{d}, v{base}, v{base+1}")
        A(f"v_add_f32 v{tmp}, v{base+2}, v{base+3}")
        A(f"v_add_f32 v{d}, v{d}, v{base+4}")
        A(f"v_add_f32 v{tmp}, v{tmp}, v{base+5}")
        A(f"v_add_f32 v{d}, v{d}, v{base+6}")
        A(f"v_add_f32 v{tmp}, v{tmp}, v{base+7}")
        A(f"v_add_f32 v{d}, v{d}, v{tmp}")
    sum8(36, 20, 38); sum8(37, 28, 39)
    allreduce("v_add_f32", [36, 37], [38, 39])
    A(f"v_mul_f32 v36, {f32(1/512)}, v36")
    A(f"v_mul_f32 v37, {f32(1/512)}, v37")
    for b in range(2):
        for k in range(8): A(f"v_sub_f32 v{20+8*b+k}, v{20+8*b+k}, v{36+b}")
    for b in range(2):
        A(f"v_mul_f32 v{40+b}, v{20+8*b}, v{20+8*b}")
        for k in range(1, 8): A(f"v_fmac_f32 v{40+b}, v{20+8*b+k}, v{20+8*b+k}")
    allreduce("v_add_f32", [40, 41], [38, 39])
    A("v_cmp_lt_u32 vcc, 7, v1")
    A("v_cndmask_b32 v36, v36, v37, vcc")
    A("v_cndmask_b32 v40, v40, v41, vcc")
    A(f"v_mul_f32 v40, {f32(1/512)}, v40")
    def ln_scalars(mean, var):
        rbf(mean, mean)
        rbf(var, var)
        A(f"v_add_f32 v{var}, {f32(1e-5)}, v{var}")
        rbf(var, var)
        A(f"v_sqrt_f32 v{var}, v{var}")
        rbf(var, var)
        A(f"v_rcp_f32 v{var}, v{var}")
    ln_scalars(36, 40)
    A.vm_wait(lx2)
    for k in range(8):
        a, b_ = 20 + 2 * k, 21 + 2 * k
        A(f"v_lshlrev_b32 v{a}, 16, v{12+k}")
        A(f"v_and_b32 v{b_}, 0xffff0000, v{12+k}")
        A(f"v_sub_f32 v{a}, v{a}, v36")
        A(f"v_sub_f32 v{b_}, v{b_}, v36")
        A(f"v_cvt_pk_bf16_f32 v38, v{a}, v{b_}")
        A(f"v_lshlrev_b32 v{a}, 16, v38")
        A(f"v_and_b32 v{b_}, 0xffff0000, v38")
        A(f"v_mul_f32 v{a}, v{a}, v40")
        A(f"v_mul_f32 v{b_}, v{b_}, v40")
        A(f"v_cvt_pk_bf16_f32 v{a}, v{a}, v{a}")
        A(f"v_cvt_pk_bf16_f32 v{b_}, v{b_}, v{b_}")
    stamp('h', 2)
    A("buffer_load_dwordx2 v[48:49], v56, s[52:55], 0 offen sc1")
    for t in range(16):
        a = 4 + 4 * (t & 1)
        for k in range(4): A(f"v_and_b32 v{a+k}, v{20+t}, v{52+k}")
        A.vm_wait(lw[t])
        A(f"v_mfma_f32_16x16x32_bf16 v[44:47], v[{a}:{a+3}], v[{64+4*t}:{67+4*t}], {'0' if t == 0 else 'v[44:47]'}")
    for k in range(4): A(f"v_min_u32 v{44+k}, -2, v{44+k}")
    stamp('h', 3)
    L = newlabel("qflag"); D = newlabel("qflagd")
    A("s_mov_b32 s70, 0")
    A.label(L)
    A("s_waitcnt vmcnt(0)"); A.vm_reset()
    A("v_and_b32 v48, v48, v49")
    A("v_cmp_ne_u32 vcc, 0x01010101, v48")
    A(f"s_cbranch_vccz {D}")
    A("s_add_u32 s70, s70, 1")
    A("s_sleep 2")
    A("buffer_load_dwordx2 v[48:49], v56, s[52:55], 0 offen sc1")
    A(f"s_cmp_lt_u32 s70, {POLL_LIMIT}")
    A(f"s_cbranch_scc1 {L}")
    A.label(D)
    A("buffer_store_dwordx4 v[44:47], v58, s[48:51], 0 offen sc1")
    stamp('h', 4)
    A("s_lshl_b32 s10, s7, 1")
    A("s_add_u32 s10, s10, s6")
    A("s_lshl_b32 s10, s10, 12")
    A("v_lshl_add_u32 v3, v0, 3, s10")
    poll([f"buffer_load_dwordx2 v[{4+2*jj}:{5+2*jj}], v3, s[48:51], 0 offen offset:{jj*512} sc1" for jj in range(8)], range(4, 20), 20)
    for k in range(2):
        A(f"v_add_f32 v{4+k}, v{4+k}, v{6+k}"); A(f"v_add_f32 v{8+k}, v{8+k}, v{10+k}")
        A(f"v_add_f32 v{12+k}, v{12+k}, v{14+k}"); A(f"v_add_f32 v{16+k}, v{16+k}, v{18+k}")
    for k in range(2):
        A(f"v_add_f32 v{4+k}, v{4+k}, v{8+k}"); A(f"v_add_f32 v{12+k}, v{12+k}, v{16+k}")
    for k in range(2): A(f"v_add_f32 v{4+k}, v{4+k}, v{12+k}")
    A("v_cvt_pk_bf16_f32 v4, v4, v5")
    A("v_lshlrev_b32 v3, 2, v0")
    A(f"ds_write_b32 v3, v4 offset:{L_Q}")
    A("s_waitcnt lgkmcnt(0)")
    stamp('h', 5)
    A("s_branch L_h_b1")
    A.vm_reset()
    A.label("L_h123")
    A("s_cmp_eq_u32 s3, 1")
    A("s_cbranch_scc0 L_h23")
    A("s_setprio 3")
    A("s_lshl_b32 s10, s7, 13")
    A("s_lshl_b32 s11, s9, 9")
    A("s_add_u32 s10, s10, s11")
    A("v_lshrrev_b32 v3, 5, v0")
    A("v_lshlrev_b32 v3, 12, v3")
    A("v_and_b32 v4, 31, v0")
    A("v_lshl_add_u32 v3, v4, 4, v3")
    A("v_add_u32 v3, s10, v3")
    A("buffer_store_dwordx4 v[60:63], v3, s[48:51], 0 offen sc1")
    A("s_lshl_b32 s10, s8, 7")
    A("s_lshl_b32 s11, s5, 5")
    A("s_add_u32 s10, s10, s11")
    A(f"s_add_u32 s10, s10, {ML:#x}")
    A("v_lshl_add_u32 v3, v0, 4, s10")
    A("s_mov_b64 exec, 3")
    A("buffer_store_dwordx4 v[60:63], v3, s[48:51], 0 offen sc1")
    A("s_lshl_b32 s10, s7, 3")
    A("s_add_u32 s10, s10, s9")
    A("s_lshl_b32 s11, s10, 2")
    A(f"s_add_u32 s11, s11, {MK:#x}")
    A("v_mov_b32 v3, s11")
    A("s_mov_b64 exec, 1")
    A("buffer_store_dword v60, v3, s[48:51], 0 offen sc1")
    A("s_lshl_b32 s11, s10, 9")
    A(f"s_add_u32 s11, s11, {OP:#x}")
    A("s_mov_b64 exec, -1")
    A("v_lshl_add_u32 v3, v0, 3, s11")
    A("buffer_store_dwordx2 v[60:61], v3, s[48:51], 0 offen sc1")
    A("s_cmp_lt_u32 s2, 64")
    A("s_cbranch_scc0 L_h1_notowner")
    owner_ids(A)
    A("s_lshl_b32 s10, s60, 12")
    A("s_lshl_b32 s11, s61, 7")
    A("s_add_u32 s10, s10, s11")
    A(f"s_add_u32 s10, s10, {YP:#x}")
    A("v_lshrrev_b32 v3, 5, v0")
    A("v_lshlrev_b32 v3, 11, v3")
    A("v_and_b32 v4, 31, v0")
    A("v_lshl_add_u32 v3, v4, 2, v3")
    A("v_add_u32 v3, s10, v3")
    A("buffer_store_dword v60, v3, s[48:51], 0 offen sc1")
    A("s_branch L_h1_done")
    A.label("L_h1_notowner")
    ffn_ids(A, "L_h1_done")
    A("s_lshl_b32 s10, s62, 6")
    A(f"s_add_u32 s10, s10, {ZP:#x}")
    A("v_lshrrev_b32 v3, 2, v0")
    A("v_mul_u32_u24 v3, 3072, v3")
    A("v_and_b32 v4, 3, v0")
    A("v_lshl_add_u32 v3, v4, 4, v3")
    A("v_add_u32 v3, s10, v3")
    for q in range(4):
        A(f"s_mov_b32 s14, {q*16*3072}")
        A("buffer_store_dwordx4 v[60:63], v3, s[48:51], s14 offen sc1")
    A.label("L_h1_done")
    A("s_lshl_b32 s10, s7, 3")
    A("s_add_u32 s10, s10, s9")
    A("v_mov_b32 v3, s10")
    A("v_mov_b32 v4, 1")
    A("s_mov_b64 exec, 1")
    A("s_waitcnt vmcnt(0)"); A.vm_reset()
    A("buffer_store_byte v4, v3, s[52:55], 0 offen sc1")
    A("s_mov_b64 exec, -1")
    stamp('h', 1)
    A("s_branch L_h_b1")
    A.label("L_h23")
    A("v_lshlrev_b32 v3, 2, v0")
    A("v_cmp_gt_u32 vcc, 12, v0")
    A("v_cndmask_b32 v4, 0, v60, vcc")
    A("s_mov_b64 exec, 0xffff")
    A(f"ds_write_b32 v3, v4 offset:{L_ML}")
    A("s_mov_b64 exec, -1")
    A("s_waitcnt lgkmcnt(0)")
    A.label("L_h_b1")
    A("s_barrier")
    A.label("L_after_b1")
    A("s_setprio 2")
    A("s_cmp_lt_u32 s2, 64")
    A("s_cbranch_scc0 L_pre_notowner")
    owner_ids(A)
    srd(40, 24, 4 << 20)
    A("s_lshl_b32 s10, s60, 3")
    A("s_lshl_b32 s11, s3, 1")
    A("s_add_u32 s10, s10, s11")
    A("s_lshl_b32 s10, s10, 17")
    A("s_lshl_b32 s11, s61, 6")
    A("s_add_u32 s10, s10, s11")
    A("v_lshlrev_b32 v3, 13, v2")
    A("v_lshl_add_u32 v3, v1, 2, v3")
    A("v_add_u32 v3, s10, v3")
    A("s_mov_b32 s10, 0x05040100")
    A("s_mov_b32 s11, 0x07060302")
    lo = {}
    for t in range(8):
        for e in range(8):
            if e % 4 == 0: A(f"s_mov_b32 s14, {t*32768 + e*1024}")
            lo[t, e] = A(f"buffer_load_dword v{128+8*t+e}, v3, s[40:43], s14 offen" + (f" offset:{(e%4)*1024}" if e % 4 else ""))
        if t == 6: A.vm_wait(lo[0, 7])
    for t in range(8):
        A.vm_wait(lo[t, 7])
        for q in range(4):
            A(f"v_perm_b32 v{64+8*t+q}, v{128+8*t+2*q+1}, v{128+8*t+2*q}, s10")
            A(f"v_perm_b32 v{68+8*t+q}, v{128+8*t+2*q+1}, v{128+8*t+2*q}, s11")
    A("s_branch L_pre_done")
    A.vm_reset()
    A.label("L_pre_notowner")
    ffn_ids(A, "L_pre_done")
    srd(40, 28, 512 * 2752)
    srd(44, 30, 512 * 2752)
    A("v_lshrrev_b32 v3, 2, v0")
    A("v_mul_u32_u24 v3, 2752, v3")
    A("v_and_b32 v4, 3, v0")
    A("v_lshl_add_u32 v3, v4, 4, v3")
    A(f"s_mul_i32 s10, s3, {128*2752}")
    A("s_lshl_b32 s11, s62, 6")
    A("s_add_u32 s10, s10, s11")
    A("v_add_u32 v3, s10, v3")
    A("s_lshl_b32 s15, s3, 13")
    for m, sr in ((0, "s[40:43]"), (1, "s[44:47]")):
        for q in range(8):
            A(f"s_add_u32 m0, s15, {L_STG + m*32768 + q*1024}")
            A(f"s_mov_b32 s14, {q*16*2752}")
            A(f"buffer_load_dwordx4 v3, {sr}, s14 offen lds")
    srd(40, 32, 1376 * 1024)
    A("s_lshl_b32 s10, s62, 15")
    A("s_lshl_b32 s11, s3, 8")
    A("s_add_u32 s10, s10, s11")
    A("v_lshlrev_b32 v3, 13, v2")
    A("v_lshl_add_u32 v3, v1, 4, v3")
    A("v_add_u32 v3, s10, v3")
    for e in range(8):
        if e % 4 == 0: A(f"s_mov_b32 s14, {e*1024}")
        A(f"buffer_load_dwordx4 v[{160+4*e}:{163+4*e}], v3, s[40:43], s14 offen" + (f" offset:{(e%4)*1024}" if e % 4 else "") + f" {o['wflags']}")
    A("s_and_b32 s10, s3, 1")
    A("s_lshl_b32 s10, s10, 10")
    A("v_lshl_add_u32 v4, v0, 3, s10")
    A("buffer_load_dwordx2 v[40:41], v4, s[56:59], 0 offen")
    A("buffer_load_dwordx2 v[42:43], v4, s[56:59], 0 offen offset:512")
    A("s_waitcnt vmcnt(0)"); A.vm_reset()
    A("s_lshl_b32 s10, s3, 2")
    A("v_mov_b32 v4, s10")
    A("v_mov_b32 v5, 1")
    A(f"ds_write_b32 v4, v5 offset:{L_SF}")
    A("s_mov_b32 s10, 0x05040100")
    A("s_mov_b32 s11, 0x07060302")
    for u in range(8):
        for q in range(4):
            A(f"v_perm_b32 v{128+4*u+q}, v{160+4*(2*q+1)+(u>>1)}, v{160+4*(2*q)+(u>>1)}, {'s11' if u & 1 else 's10'}")
    for k in range(4):
        A(f"v_lshlrev_b32 v{44+2*k}, 16, v{40+k}")
        A(f"v_and_b32 v{45+2*k}, 0xffff0000, v{40+k}")
    L = newlabel("sf"); D = newlabel("sfd")
    A("s_mov_b32 s70, 0")
    A("v_mov_b32 v4, 0")
    A.label(L)
    A(f"ds_read_b128 v[8:11], v4 offset:{L_SF}")
    A("s_waitcnt lgkmcnt(0)")
    maxtree(12, range(8, 12))
    A("v_cmp_eq_u32 vcc, -1, v12")
    A(f"s_cbranch_vccz {D}")
    A("s_add_u32 s70, s70, 1")
    A("s_sleep 4")
    A(f"s_cmp_lt_u32 s70, {POLL_LIMIT}")
    A(f"s_cbranch_scc1 {L}")
    A.label(D)
    A("v_and_b32 v3, 1, v1")
    A("v_lshlrev_b32 v3, 15, v3")
    A("v_lshl_add_u32 v3, v2, 9, v3")
    A("v_and_b32 v4, 14, v1")
    A("v_add_u32 v3, v3, v4")
    A("s_lshl_b32 s10, s3, 4")
    A(f"s_add_u32 s10, s10, {L_STG}")
    A("v_add_u32 v3, s10, v3")
    for t in range(16):
        for e in range(8):
            A(f"ds_read_u16 v{8+e}, v3 offset:{t*2048 + e*64}")
        A("s_waitcnt lgkmcnt(0)")
        for q in range(4):
            A(f"v_lshl_or_b32 v{64+4*t+q}, v{8+2*q+1}, 16, v{8+2*q}")
    A.label("L_pre_done")
    A.vm_reset()
    stamp('h', 6)
    A("s_cmp_eq_u32 s3, 0")
    A("s_cbranch_scc0 L_b3")
    L = newlabel("af"); D = newlabel("afd")
    A("v_lshlrev_b32 v3, 2, v0")
    A("s_mov_b32 s70, 0")
    A.label(L)
    A("buffer_load_dword v4, v3, s[52:55], 0 offen sc1")
    A("s_waitcnt vmcnt(0)"); A.vm_reset()
    A("v_cmp_ne_u32 vcc, 0x01010101, v4")
    A(f"s_cbranch_vccz {D}")
    A("s_add_u32 s70, s70, 1")
    A("s_sleep 32")
    A(f"s_cmp_lt_u32 s70, {POLL_LIMIT}")
    A(f"s_cbranch_scc1 {L}")
    A.label(D)
    L = newlabel("ml"); D = newlabel("mld")
    A("v_and_b32 v3, 3, v0")
    A("v_lshlrev_b32 v3, 3, v3")
    A("s_mov_b32 s70, 0")
    A.label(L)
    A(f"ds_read_b64 v[4:5], v3 offset:{L_ML}")
    A("s_waitcnt lgkmcnt(0)")
    A("v_max_u32 v6, v4, v5")
    A("v_cmp_eq_u32 vcc, -1, v6")
    A(f"s_cbranch_vccz {D}")
    A("s_add_u32 s70, s70, 1")
    A("s_sleep 16")
    A(f"s_cmp_lt_u32 s70, {POLL_LIMIT}")
    A(f"s_cbranch_scc1 {L}")
    A.label(D)
    A("s_lshl_b32 s10, s8, 7")
    A(f"s_add_u32 s10, s10, {ML:#x}")
    A("s_lshl_b32 s11, s5, 5")
    A("s_add_u32 s11, s11, s10")
    A("v_add_u32 v3, s11, v3")
    A("s_mov_b64 exec, 15")
    A("buffer_store_dwordx2 v[4:5], v3, s[48:51], 0 offen sc1")
    A("s_mov_b64 exec, -1")
    A("v_lshl_add_u32 v3, v1, 3, s10")
    poll(["buffer_load_dwordx2 v[4:5], v3, s[48:51], 0 offen sc1"], [4, 5], 6, sleep=8, masked=False)
    A("v_mov_b32 v6, v4")
    for k in (8, 4, 2, 1): A(f"v_max_f32_dpp v6, v6, v6 row_ror:{k} row_mask:0xf bank_mask:0xf")
    A("v_sub_f32 v4, v4, v6")
    A(f"v_mul_f32 v4, {f32(LOG2E)}, v4")
    A("v_exp_f32 v4, v4")
    A("v_mul_f32 v5, v5, v4")
    for k in (8, 4, 2, 1): A(f"v_add_f32_dpp v5, v5, v5 row_ror:{k} row_mask:0xf bank_mask:0xf")
    A("v_rcp_f32 v5, v5")
    A("v_mul_f32 v4, v4, v5")
    A("s_lshl_b32 s10, s5, 2")
    for w in range(4):
        A(f"v_readlane_b32 s{64+w}, v4, s10")
        if w < 3: A("s_add_u32 s10, s10, 1")
    A("v_and_b32 v3, 31, v0")
    A("v_lshlrev_b32 v58, 4, v3")
    A("v_lshrrev_b32 v4, 3, v3")
    A("v_lshlrev_b32 v4, 7, v4")
    A("v_and_b32 v5, 7, v0")
    A("v_lshl_add_u32 v4, v5, 3, v4")
    A("v_lshrrev_b32 v5, 5, v0")
    A("v_lshl_add_u32 v4, v5, 6, v4")
    A("s_lshl_b32 s10, s7, 3")
    A("s_add_u32 s10, s10, s9")
    A("s_lshl_b32 s10, s10, 9")
    A(f"s_add_u32 s10, s10, {OP:#x}")
    A("v_add_u32 v59, s10, v4")
    A("s_mov_b32 s68, 0")
    A("s_mov_b32 s69, -1")
    A("s_barrier")
    stamp('h', 7)
    for w in range(4): A(f"ds_read_b128 v[{4+4*w}:{7+4*w}], v58 offset:{L_O + 512*w}")
    A("s_waitcnt lgkmcnt(3)")
    for k in range(4): A(f"v_mul_f32 v{4+k}, s64, v{4+k}")
    for w in range(1, 4):
        A(f"s_waitcnt lgkmcnt({3-w})")
        for k in range(4): A(f"v_fmac_f32 v{4+k}, s{64+w}, v{4+4*w+k}")
    A("v_cvt_pk_bf16_f32 v8, v4, v5")
    A("v_cvt_pk_bf16_f32 v9, v6, v7")
    A("v_lshlrev_b32 v10, 16, v8"); A("v_and_b32 v11, 0xffff0000, v8")
    A("v_lshlrev_b32 v12, 16, v9"); A("v_and_b32 v13, 0xffff0000, v9")
    for k in range(4): A(f"v_sub_f32 v{4+k}, v{4+k}, v{10+k}")
    A("v_cvt_pk_bf16_f32 v10, v4, v5")
    A("v_cvt_pk_bf16_f32 v11, v6, v7")
    A("v_cndmask_b32 v8, v8, v10, s[68:69]")
    A("v_cndmask_b32 v9, v9, v11, s[68:69]")
    A("v_min_u32 v8, -2, v8"); A("v_min_u32 v9, -2, v9")
    A("buffer_store_dwordx2 v[8:9], v59, s[48:51], 0 offen sc1")
    A("s_branch L_tail")
    A.label("L_b3")
    A("s_barrier")
    A.label("L_tail")
    A.vm_reset()
    A("s_cmp_lt_u32 s2, 64")
    A("s_cbranch_scc0 L_t_notowner")
    owner_ids(A)
    A("s_lshl_b32 s10, s60, 3")
    A("s_lshl_b32 s11, s3, 1")
    A("s_add_u32 s12, s10, s11")
    A("s_lshl_b32 s10, s12, 5")
    A(f"s_add_u32 s10, s10, {MK:#x}")
    A("v_lshl_add_u32 v3, v1, 2, s10")
    poll(["buffer_load_dword v4, v3, s[48:51], 0 offen sc1"], [4], 5, sleep=o['sleep_gate'], masked=False)
    A("s_lshl_b32 s10, s12, 12")
    A(f"s_add_u32 s10, s10, {OP:#x}")
    A("v_lshrrev_b32 v3, 1, v1")
    A("v_lshlrev_b32 v3, 9, v3")
    A("v_and_b32 v4, 1, v1")
    A("v_lshl_add_u32 v3, v4, 6, v3")
    A("v_lshl_add_u32 v3, v2, 4, v3")
    A("v_add_u32 v3, s10, v3")
    A("s_movk_i32 s14, 4096")
    A("v_and_b32 v4, 1, v2")
    A("v_lshlrev_b32 v4, 8, v4")
    A("v_lshrrev_b32 v5, 1, v2")
    A("v_lshl_add_u32 v4, v5, 7, v4")
    A("v_lshl_add_u32 v4, v1, 3, v4")
    A("s_lshl_b32 s10, s3, 9")
    A("v_add_u32 v56, s10, v4")
    A("v_lshlrev_b32 v57, 2, v0")
    A("s_lshl_b32 s10, s60, 12")
    A("s_lshl_b32 s11, s61, 7")
    A("s_add_u32 s10, s10, s11")
    A(f"s_add_u32 s10, s10, {YP:#x}")
    A("v_lshrrev_b32 v4, 5, v0")
    A("v_lshlrev_b32 v4, 11, v4")
    A("v_and_b32 v5, 31, v0")
    A("v_lshl_add_u32 v4, v5, 2, v4")
    A("v_add_u32 v58, s10, v4")
    stamp('h', 8)
    poll([f"buffer_load_dwordx4 v[{8+4*t}:{11+4*t}], v3, s[48:51], {'s14' if t >= 4 else '0'} offen offset:{(t&3)*128} sc1" for t in range(8)], range(8, 40), 4)
    stamp('h', 9)
    for t in range(8):
        A(f"v_mfma_f32_16x16x32_bf16 v[40:43], v[{8+4*t}:{11+4*t}], v[{64+8*t}:{67+8*t}], {'0' if t == 0 else 'v[40:43]'}")
        A(f"v_mfma_f32_16x16x32_bf16 v[44:47], v[{8+4*t}:{11+4*t}], v[{68+8*t}:{71+8*t}], {'0' if t == 0 else 'v[44:47]'}")
    A("v_add_f32 v40, v40, v41"); A("v_add_f32 v42, v42, v43")
    A("v_add_f32 v44, v44, v45"); A("v_add_f32 v46, v46, v47")
    A("v_add_f32 v40, v40, v42"); A("v_add_f32 v41, v44, v46")
    A(f"ds_write_b64 v56, v[40:41] offset:{L_YS}")
    A("s_waitcnt lgkmcnt(0)")
    A("s_barrier")
    A("s_cmp_eq_u32 s3, 0")
    A("s_cbranch_scc0 L_h_end")
    for q in range(4):
        A(f"ds_read2st64_b32 v[{8+2*q}:{9+2*q}], v57 offset0:{L_YS//256 + 2*q} offset1:{L_YS//256 + 2*q+1}")
    A("s_waitcnt lgkmcnt(2)")
    A("v_add_f32 v8, v8, v9"); A("v_add_f32 v10, v10, v11")
    A("s_waitcnt lgkmcnt(0)")
    A("v_add_f32 v12, v12, v13"); A("v_add_f32 v14, v14, v15")
    A("v_add_f32 v8, v8, v10"); A("v_add_f32 v12, v12, v14")
    A("v_add_f32 v8, v8, v12")
    A("v_min_u32 v8, -2, v8")
    A("buffer_store_dword v8, v58, s[48:51], 0 offen sc1")
    stamp('h', 10)
    A("s_branch L_h_end")
    A.vm_reset()
    A.label("L_t_notowner")
    ffn_ids(A, "L_t_notffn")
    A("v_and_b32 v4, 1, v1")
    A(f"v_mul_u32_u24 v52, {XN_STRIDE}, v4")
    A("v_lshl_add_u32 v52, v2, 4, v52")
    A("v_lshlrev_b32 v53, 6, v4")
    A("v_lshl_add_u32 v5, v2, 4, v53")
    A(f"v_add_u32 v5, {L_ACT}, v5")
    A("v_lshl_add_u32 v53, v2, 2, v53")
    A("s_lshl_b32 s10, s3, 4")
    A("v_add_u32 v53, s10, v53")
    A("v_lshrrev_b32 v6, 1, v1")
    A(f"v_mov_b32 v7, {L_ZERO}")
    for u in range(8):
        A(f"v_cmp_eq_u32 vcc, {u}, v6")
        A(f"v_cndmask_b32 v{160+u}, v7, v5, vcc")
    A("v_lshlrev_b32 v7, 5, v4")
    A("v_lshl_add_u32 v7, v2, 1, v7")
    A("v_lshrrev_b32 v5, 2, v6")
    A("v_add_u32 v7, v7, v5")
    A("s_lshl_b32 s10, s3, 3")
    A("v_add_u32 v7, s10, v7")
    A("v_mul_u32_u24 v7, 3072, v7")
    A("v_and_b32 v5, 3, v6")
    A("v_lshl_add_u32 v7, v5, 4, v7")
    A("s_lshl_b32 s10, s62, 6")
    A(f"s_add_u32 s10, s10, {ZP:#x}")
    A("v_add_u32 v54, s10, v7")
    A(f"s_mov_b32 s64, {f32(2 * 0.7978845608028654 * LOG2E)}")
    A(f"s_mov_b32 s65, {f32(2 * 0.7978845608028654 * LOG2E * 0.044715)}")
    A("s_cmp_lt_u32 s3, 2")
    A("s_cbranch_scc0 L_f_bar1")
    A("v_lshlrev_b32 v3, 4, v0")
    A(f"v_add_u32 v3, {MK:#x}, v3")
    poll(["buffer_load_dwordx4 v[8:11], v3, s[48:51], 0 offen sc1"], range(8, 12), 4, sleep=o['sleep_gate'], masked=True)
    A("s_lshl_b32 s10, s3, 11")
    A(f"s_add_u32 s10, s10, {YP:#x}")
    A("v_lshl_add_u32 v3, v0, 4, s10")
    A("s_movk_i32 s12, 4096"); A("s_movk_i32 s13, 8192"); A("s_movk_i32 s14, 12288")
    A(f"s_mul_i32 s10, s3, {XN_STRIDE}")
    A("v_lshl_add_u32 v55, v0, 3, s10")
    stamp('h', 8)
    so = ["0", "s12", "s13", "s14"]
    poll([f"buffer_load_dwordx4 v[{8+8*t+4*hh}:{11+8*t+4*hh}], v3, s[48:51], {so[t]} offen offset:{hh*1024} sc1" for t in range(4) for hh in range(2)], range(8, 40), 4)
    stamp('h', 9)
    for k in range(8): A(f"v_add_f32 v{8+k}, v{8+k}, v{16+k}")
    for k in range(8): A(f"v_add_f32 v{24+k}, v{24+k}, v{32+k}")
    for k in range(8): A(f"v_add_f32 v{8+k}, v{8+k}, v{24+k}")
    def rbf_pairs(base, n, tmp):
        for k in range(0, n, 2): A(f"v_cvt_pk_bf16_f32 v{tmp+k//2}, v{base+k}, v{base+k+1}")
        for k in range(0, n, 2):
            A(f"v_lshlrev_b32 v{base+k}, 16, v{tmp+k//2}")
            A(f"v_and_b32 v{base+k+1}, 0xffff0000, v{tmp+k//2}")
    rbf_pairs(8, 8, 16)
    for k in range(8): A(f"v_add_f32 v{8+k}, v{8+k}, v{44+k}")
    rbf_pairs(8, 8, 16)
    sum8(20, 8, 21)
    allreduce("v_add_f32", [20], [21])
    A(f"v_mul_f32 v20, {f32(1/512)}, v20")
    for k in range(8): A(f"v_sub_f32 v{24+k}, v{8+k}, v20")
    A("v_mul_f32 v22, v24, v24"); A("v_mul_f32 v23, v25, v25")
    for k in range(2, 8): A(f"v_fmac_f32 v{22+(k&1)}, v{24+k}, v{24+k}")
    A("v_add_f32 v22, v22, v23")
    allreduce("v_add_f32", [22], [21])
    A(f"v_mul_f32 v22, {f32(1/512)}, v22")
    ln_scalars(20, 22)
    for k in range(8): A(f"v_sub_f32 v{8+k}, v{8+k}, v20")
    rbf_pairs(8, 8, 16)
    for k in range(8): A(f"v_mul_f32 v{8+k}, v{8+k}, v22")
    for k in range(4): A(f"v_cvt_pk_bf16_f32 v{16+k}, v{8+2*k}, v{9+2*k}")
    A(f"ds_write_b64 v55, v[16:17] offset:{L_XN}")
    A(f"ds_write_b64 v55, v[18:19] offset:{L_XN + 512}")
    A("s_waitcnt lgkmcnt(0)")
    A.label("L_f_bar1")
    A("s_barrier")
    stamp('h', 10)
    for t in range(12): A(f"ds_read_b128 v[{176+4*t}:{179+4*t}], v52 offset:{L_XN + 64*t}")
    for t in range(16):
        A(f"s_waitcnt lgkmcnt({11 if t < 4 else 15-t})")
        if t < 4: A(f"ds_read_b128 v[{176+4*(t+12)}:{179+4*(t+12)}], v52 offset:{L_XN + 64*(t+12)}")
        A(f"v_mfma_f32_16x16x32_bf16 v[8:11], v[{64+4*t}:{67+4*t}], v[{176+4*t}:{179+4*t}], {'0' if t == 0 else 'v[8:11]'}")
    rbf_pairs(8, 4, 16)
    for gsrc, tmp in ((8, 12), (10, 13)): A(f"v_mul_f32 v{tmp}, v{gsrc}, v{gsrc}")
    A("v_mov_b32 v14, s64")
    for gsrc, tmp in ((8, 12), (10, 13)): A(f"v_fma_f32 v{tmp}, v{tmp}, s65, v14")
    for gsrc, tmp in ((8, 12), (10, 13)): A(f"v_mul_f32 v{tmp}, v{tmp}, v{gsrc}")
    for gsrc, tmp in ((8, 12), (10, 13)): A(f"v_exp_f32 v{tmp}, -v{tmp}")
    for gsrc, tmp in ((8, 12), (10, 13)): A(f"v_add_f32 v{tmp}, 1.0, v{tmp}")
    for gsrc, tmp in ((8, 12), (10, 13)): A(f"v_rcp_f32 v{tmp}, v{tmp}")
    for gsrc, tmp in ((8, 12), (10, 13)): A(f"v_mul_f32 v{tmp}, v{tmp}, v{gsrc}")
    rbf_pairs(12, 2, 16)
    A("v_mul_f32 v12, v12, v9"); A("v_mul_f32 v13, v13, v11")
    A("v_cvt_pk_bf16_f32 v12, v12, v13")
    A(f"ds_write_b32 v53, v12 offset:{L_ACT}")
    A("s_waitcnt lgkmcnt(0)")
    A("s_barrier")
    for u in range(8): A(f"ds_read_b128 v[{176+4*u}:{179+4*u}], v{160+u}")
    for u in range(8):
        A(f"s_waitcnt lgkmcnt({7-u})")
        A(f"v_mfma_f32_16x16x32_bf16 v[8:11], v[{128+4*u}:{131+4*u}], v[{176+4*u}:{179+4*u}], {'0' if u == 0 else 'v[8:11]'}")
    for k in range(4): A(f"v_min_u32 v{8+k}, -2, v{8+k}")
    A("buffer_store_dwordx4 v[8:11], v54, s[48:51], 0 offen sc1")
    stamp('h', 11)
    A("s_branch L_h_end")
    A.vm_reset()
    A.label("L_t_notffn")
    A("s_sub_u32 s60, s2, 128")
    A("s_cmp_lt_u32 s60, 64")
    A("s_cbranch_scc0 L_h_end")
    A("s_cmp_eq_u32 s3, 1")
    A("s_cbranch_scc0 L_h_end")
    A("s_lshr_b32 s10, s60, 1")
    A("s_and_b32 s10, s10, 15")
    A("s_lshl_b32 s10, s10, 5")
    A("s_and_b32 s11, s60, 1")
    A("s_lshl_b32 s11, s11, 2")
    A("s_add_u32 s10, s10, s11")
    A("s_lshr_b32 s11, s60, 5")
    A("s_lshl_b32 s11, s11, 9")
    A("s_add_u32 s10, s10, s11")
    A("v_and_b32 v3, 8, v0")
    A("v_and_b32 v4, 4, v0")
    A("v_lshl_add_u32 v3, v4, 2, v3")
    A("v_and_b32 v4, 3, v0")
    A("v_add_u32 v3, v3, v4")
    A("v_add_u32 v3, s10, v3")
    A("v_lshlrev_b32 v56, 1, v3")
    A("buffer_load_ushort v40, v56, s[56:59], 0 offen")
    A("v_lshlrev_b32 v3, 2, v3")
    A("v_lshl_add_u32 v3, v2, 12, v3")
    A(f"v_add_u32 v57, {YP:#x}, v3")
    srd(40, 34, 2048)
    A("s_mul_i32 s10, s60, 3072")
    A(f"s_add_u32 s10, s10, {ZP:#x}")
    A("v_lshl_add_u32 v58, v0, 4, s10")
    A("v_cmp_gt_u32 vcc, 44, v0")
    A("v_mov_b32 v4, 0x7ff00000")
    A("v_cndmask_b32 v59, v4, v58, vcc")
    A("v_lshlrev_b32 v3, 4, v0")
    A(f"v_add_u32 v3, {MK:#x}, v3")
    poll(["buffer_load_dwordx4 v[8:11], v3, s[48:51], 0 offen sc1"], range(8, 12), 4, sleep=o['sleep_gate'], masked=True)
    poll(["buffer_load_dword v41, v57, s[48:51], 0 offen sc1"], [41], 4, sleep=2, masked=True)
    crossrows("v_add_f32", [41], [42])
    rbf(41, 41)
    A("v_lshlrev_b32 v40, 16, v40")
    A("v_add_f32 v41, v41, v40")
    rbf(41, 41)
    stamp('h', 8)
    poll(["buffer_load_dwordx4 v[8:11], v58, s[48:51], 0 offen sc1",
          "buffer_load_dwordx4 v[12:15], v58, s[48:51], 0 offen offset:1024 sc1",
          "buffer_load_dwordx4 v[16:19], v59, s[48:51], 0 offen offset:2048 sc1"], range(8, 20), 4)
    stamp('h', 9)
    for k in range(4): A(f"v_add_f32 v{8+k}, v{8+k}, v{12+k}")
    for k in range(4): A(f"v_add_f32 v{8+k}, v{8+k}, v{16+k}")
    A("v_add_f32_dpp v12, v8, v8 row_ror:8 row_mask:0xf bank_mask:0x3")
    A("v_add_f32_dpp v13, v10, v10 row_ror:8 row_mask:0xf bank_mask:0x3")
    A("v_add_f32_dpp v12, v9, v9 row_ror:8 row_mask:0xf bank_mask:0xc")
    A("v_add_f32_dpp v13, v11, v11 row_ror:8 row_mask:0xf bank_mask:0xc")
    A("v_add_f32_dpp v14, v12, v12 row_shl:4 row_mask:0xf bank_mask:0x5")
    A("v_add_f32_dpp v14, v13, v13 row_shr:4 row_mask:0xf bank_mask:0xa")
    crossrows("v_add_f32", [14], [15])
    rbf(14, 14)
    A("v_add_f32 v14, v14, v41")
    A("v_cvt_pk_bf16_f32 v14, v14, v14")
    A("s_mov_b64 exec, 0xffff")
    A("buffer_store_short v14, v56, s[40:43], 0 offen")
    stamp('h', 10)
    A.label("L_h_end")
    flush_stamps(12)
    A("s_endpgm")
    A.raw('.section .rodata,"a"')
    A.raw(".p2align 6")
    A.raw(f".amdhsa_kernel {NAME}_kernel")
    A.raw("  .amdhsa_next_free_vgpr 256")
    A.raw("  .amdhsa_next_free_sgpr 102")
    A.raw("  .amdhsa_accum_offset 256")
    A.raw("  .amdhsa_group_segment_fixed_size 0")
    A.raw("  .amdhsa_kernarg_size 96")
    A.raw("  .amdhsa_user_sgpr_count 2")
    A.raw("  .amdhsa_user_sgpr_kernarg_segment_ptr 1")
    A.raw("  .amdhsa_system_sgpr_workgroup_id_x 1")
    A.raw(".end_amdhsa_kernel")
    return A.text()

def owner_ids(A):
    A("s_lshr_b32 s60, s2, 4")
    A("s_bfe_u32 s61, s2, 0x10003")
    A("s_lshl_b32 s63, s4, 1")
    A("s_add_u32 s61, s61, s63")

def ffn_ids(A, skip):
    A("s_sub_u32 s63, s2, 64")
    A("s_cmp_lt_u32 s63, 48")
    A(f"s_cbranch_scc0 {skip}")
    A("s_lshr_b32 s63, s63, 3")
    A("s_mul_i32 s62, s4, 6")
    A("s_add_u32 s62, s62, s63")
    A(f"s_cmp_lt_u32 s62, {NFFN}")
    A(f"s_cbranch_scc0 {skip}")

if __name__ == "__main__":
    out = sys.argv[1] if len(sys.argv) > 1 else "cdna_kernels/" + NAME + ".s"
    kw = {}
    for a in sys.argv[2:]:
        k, v = a.split("=")
        try: v = int(v)
        except ValueError: pass
        kw[k] = v
    open(out, "w").write(gen(**kw))
    print("wrote", out)
```
